```python
import torch

def _softmax(x, axis=-1):
    return torch.softmax(x, dim=axis)

def _gelu(x):
    return torch.nn.functional.gelu(x, approximate='tanh')

def _silu(x):
    return torch.nn.functional.silu(x)

def _sigmoid(x):
    return torch.sigmoid(x)

def _layernorm(x, axis=-1, eps=1e-05):
    m = x.mean(dim=axis, keepdim=True)
    v = x.var(dim=axis, keepdim=True, unbiased=False)
    return (x - m) / torch.sqrt(v + eps)

def _scatter_add(tgt, idx, src, axis=0):
    return tgt.clone().index_add_(axis, idx, src)

def _segment_sum(src, seg, n):
    out = torch.zeros((n,) + src.shape[1:], dtype=src.dtype)
    return out.index_add_(0, seg, src)

def _pad(x, pw):
    flat = tuple((v for pair in reversed(pw) for v in pair))
    return torch.nn.functional.pad(x, flat)
kernel_name = 'parallel_sum__memory_aug_recurrent_mem_tr__dense_activation_gelu__prompt'

def setup_inputs():

    _w = lambda a: (lambda t: t.to(torch.bfloat16) if t.is_floating_point() else t)(torch.as_tensor(a))

    def _A_setup():
        B, S, Dm = (1, 2048, 1024)
        H, Dh = (32, 128)
        M, seg = (8, 32)
        seg = min(seg, S)
        S = S // seg * seg
        return {'x': _w((lambda *s: torch.randn(*s, dtype=torch.bfloat16) * 0.05)(B, S, Dm)), 'mem0': _w((lambda *s: torch.randn(*s, dtype=torch.bfloat16) * 0.2)(B, M, Dm)), 'Wq': _w((lambda *s: torch.randn(*s, dtype=torch.bfloat16) * 1.6)(Dm, H, Dh) * Dm ** (-0.5)), 'Wk': _w((lambda *s: torch.randn(*s, dtype=torch.bfloat16) * 1.6)(Dm, H, Dh) * Dm ** (-0.5)), 'Wv': _w((lambda *s: torch.randn(*s, dtype=torch.bfloat16) * 0.2)(Dm, H, Dh) * Dm ** (-0.5)), 'Wo': _w((lambda *s: torch.randn(*s, dtype=torch.bfloat16) * 0.2)(H, Dh, Dm) * (H * Dh) ** (-0.5)), 'seg_len': seg}
    _A_in = _A_setup()

    def _B_setup():
        B, S, D, F = (1, 2048, 1024, 3584)
        return {'x': _w((lambda *s: torch.randn(*s, dtype=torch.bfloat16) * 0.05)(B, S, D)), 'w1': _w((lambda *s: torch.randn(*s, dtype=torch.bfloat16) * 0.4)(D, F) * D ** (-0.5)), 'b1': _w((lambda *s: torch.randn(*s, dtype=torch.bfloat16) * 12.8)(F) * 0.01), 'w2': _w((lambda *s: torch.randn(*s, dtype=torch.bfloat16) * 0.1)(F, D) * F ** (-0.5)), 'b2': _w((lambda *s: torch.randn(*s, dtype=torch.bfloat16) * 1.6)(D) * 0.01)}
    _B_in = _B_setup()
    return {'A_x': _A_in['x'], 'A_mem0': _A_in['mem0'], 'A_Wq': _A_in['Wq'], 'A_Wk': _A_in['Wk'], 'A_Wv': _A_in['Wv'], 'A_Wo': _A_in['Wo'], 'A_seg_len': _A_in['seg_len'], 'B_x': _B_in['x'], 'B_w1': _B_in['w1'], 'B_b1': _B_in['b1'], 'B_w2': _B_in['w2'], 'B_b2': _B_in['b2']}

def reference(A_x, A_mem0, A_Wq, A_Wk, A_Wv, A_Wo, A_seg_len, B_x, B_w1, B_b1, B_w2, B_b2):

    def _A_ref(x, mem0, Wq, Wk, Wv, Wo, seg_len):
        B, S, Dm = x.shape
        H, Dh = (Wq.shape[1], Wq.shape[2])
        M = mem0.shape[1]
        scale = Dh ** (-0.5)
        n_seg = S // seg_len
        L = M + seg_len
        idx = torch.arange(L)
        mask = (idx[:, None] < M) | (idx[:, None] >= idx[None, :])
        mem = mem0
        outs = []
        for s in range(n_seg):
            xs = x[:, s * seg_len:(s + 1) * seg_len, :].clone()
            h = torch.concatenate([mem, xs], axis=1)
            q = torch.einsum('btd,dhe->bhte', h, Wq)
            k = torch.einsum('btd,dhe->bhte', h, Wk)
            v = torch.einsum('btd,dhe->bhte', h, Wv)
            scores = torch.einsum('bhqe,bhke->bhqk', q, k) * scale
            scores = torch.where(mask[None, None], scores, -1000000000.0)
            p = _softmax(scores, axis=-1)
            o = torch.einsum('bhqk,bhke->bhqe', p, v)
            o = torch.einsum('bhte,hed->btd', o, Wo)
            mem = o[:, :M, :].clone()
            outs.append(o[:, M:, :])
        return torch.concatenate(outs, axis=1)

    def _B_ref(x, w1, b1, w2, b2):
        h = torch.einsum('bsd,df->bsf', x, w1) + b1
        h = _gelu(h)
        return torch.einsum('bsf,fd->bsd', h, w2) + b2
    x = A_x
    xn = _layernorm(x, axis=-1)
    return x + _A_ref(xn, A_mem0, A_Wq, A_Wk, A_Wv, A_Wo, A_seg_len) + _B_ref(xn, B_w1, B_b1, B_w2, B_b2)
```

```python
from common import *
import gen as G

V_RS = 288
ATT_LDS = 4 * 64 * V_RS


def gen_att(a):
    name = "att_kernel"
    kernel_begin(a, name)
    a(f"""
    s_cmp_ge_u32 s2, 512
    s_cbranch_scc1 A_done
    s_load_dwordx2 s[4:5], s[0:1], {KARG['ws']}
    v_lshrrev_b32 v1, 6, v0             ; wave
    v_and_b32 v2, 63, v0                ; lane
    v_and_b32 v3, 15, v2                ; l%16
    v_lshrrev_b32 v4, 4, v2             ; g
    s_nop 0
    v_readfirstlane_b32 s52, v1
    s_lshl_b32 s50, s2, 2
    s_nop 2
    s_add_u32 s50, s50, s52             ; W
    s_and_b32 s51, s50, 31              ; h
    s_lshr_b32 s50, s50, 5              ; s
    s_mul_i32 s53, s52, {64*V_RS}
    s_waitcnt lgkmcnt(0)""")
    srd(a, 8, 4, 5, 256 * MB)
    a(f"""    ; frag load offset: (l%16)*8192 + g*16
    v_lshlrev_b32 v5, 13, v3
    v_lshlrev_b32 v6, 4, v4
    v_add_u32 v5, v5, v6
    s_lshl_b32 s54, s50, 18             ; 32s*8192
    s_lshl_b32 s55, s51, 8
    s_add_u32 s54, s54, s55
    s_lshl_b32 s56, s50, 16             ; s*8*8192
    s_add_u32 s56, s56, s55""")
    for qb in range(2):
        for ks in range(4):
            a(f"    s_add_u32 s57, s54, {WS_Q + qb*16*8192 + ks*64}")
            a(f"    buffer_load_dwordx4 v[{32+16*qb+4*ks}:{35+16*qb+4*ks}], v5, s[8:11], s57 offen")
    for b in range(2):
        for ks in range(4):
            a(f"    s_add_u32 s57, s54, {WS_K + b*16*8192 + ks*64}")
            a(f"    buffer_load_dwordx4 v[{64+16*b+4*ks}:{67+16*b+4*ks}], v5, s[8:11], s57 offen")
    a("""    v_and_b32 v7, 7, v3
    v_lshlrev_b32 v7, 13, v7
    v_add_u32 v7, v7, v6""")
    for ks in range(4):
        a(f"    s_add_u32 s57, s56, {WS_KM + ks*64}")
        a(f"    buffer_load_dwordx4 v[{96+4*ks}:{99+4*ks}], v7, s[8:11], s57 offen")
    a(f"""    v_lshrrev_b32 v8, 4, v2
    v_lshlrev_b32 v9, 4, v3             ; chunk*16
    v_lshlrev_b32 v10, 13, v8
    v_add_u32 v10, v10, v9
    v_mul_u32_u24 v11, {V_RS}, v8
    v_add_u32 v11, v11, v9
    v_add_u32 v11, s53, v11""")
    for i in range(8):
        a(f"    s_add_u32 s57, s54, {WS_V + i*4*8192}")
        a(f"    buffer_load_dwordx4 v[{112+4*i}:{115+4*i}], v10, s[8:11], s57 offen")
    for i in range(2):
        a(f"    s_add_u32 s57, s56, {WS_VM + i*4*8192}")
        a(f"    buffer_load_dwordx4 v[{144+4*i}:{147+4*i}], v10, s[8:11], s57 offen")
    a("""    v_mov_b32 v152, 0
    v_mov_b32 v153, 0
    v_mov_b32 v154, 0
    v_mov_b32 v155, 0""")
    for i in (2, 3, 12, 13, 14, 15):
        a(f"    ds_write_b128 v11, v[152:155] offset:{i*4*V_RS}")
    a("    s_waitcnt vmcnt(0)")
    for i in range(8):
        a(f"    ds_write_b128 v11, v[{112+4*i}:{115+4*i}] offset:{(16+4*i)*V_RS}")
    for i in range(2):
        a(f"    ds_write_b128 v11, v[{144+4*i}:{147+4*i}] offset:{4*i*V_RS}")
    a(f"""    v_lshrrev_b32 v13, 2, v3
    v_lshlrev_b32 v12, 2, v4
    v_add_u32 v12, v12, v13
    v_mul_u32_u24 v12, {V_RS}, v12
    v_and_b32 v13, 3, v3
    v_lshlrev_b32 v13, 3, v13
    v_add_u32 v12, v12, v13
    v_add_u32 v12, s53, v12
    v_xor_b32 v14, 16, v2
    v_lshlrev_b32 v14, 2, v14
    v_xor_b32 v15, 32, v2
    v_lshlrev_b32 v15, 2, v15
    s_mov_b32 s55, 0x3db504f3
    s_mov_b32 s56, 0x3fb8aa3b
    ; out offset: (l%16)*8192 + 4g*2
    v_lshlrev_b32 v16, 13, v3
    v_lshlrev_b32 v17, 3, v4
    v_add_u32 v16, v16, v17
    v_lshlrev_b32 v18, 2, v4            ; 4g
    s_waitcnt lgkmcnt(0)""")
    for qb in range(2):
        for i in range(12):
            a(f"    v_mov_b32 v{128+i}, 0")
        a("    s_nop 1")
        for ks in range(4):
            q = f"v[{32+16*qb+4*ks}:{35+16*qb+4*ks}]"
            a(f"    v_mfma_f32_16x16x32_bf16 v[128:131], v[{96+4*ks}:{99+4*ks}], {q}, v[128:131]")
            a(f"    v_mfma_f32_16x16x32_bf16 v[132:135], v[{64+4*ks}:{67+4*ks}], {q}, v[132:135]")
            a(f"    v_mfma_f32_16x16x32_bf16 v[136:139], v[{80+4*ks}:{83+4*ks}], {q}, v[136:139]")
        a("    s_nop 7")
        for i in range(0, 12, 2):
            a(f"""    v_cvt_pk_bf16_f32 v140, v{128+i}, v{129+i}
    v_lshlrev_b32 v{128+i}, 16, v140
    v_and_b32 v{129+i}, 0xffff0000, v140
    v_mul_f32 v{128+i}, s55, v{128+i}
    v_mul_f32 v{129+i}, s55, v{129+i}
    v_cvt_pk_bf16_f32 v140, v{128+i}, v{129+i}
    v_lshlrev_b32 v{128+i}, 16, v140
    v_and_b32 v{129+i}, 0xffff0000, v140""")
        a("""    v_mov_b32 v141, 0xce6e6b28
    v_cmp_le_u32 vcc, 2, v4""")
        for i in range(4):
            a(f"    v_cndmask_b32 v{128+i}, v{128+i}, v141, vcc")
        a(f"    v_add_u32 v142, {16*qb}, v3")
        for b in range(2):
            for i in range(4):
                a(f"""    v_add_u32 v143, {16*b+i}, v18
    v_cmp_gt_u32 vcc, v143, v142
    v_cndmask_b32 v{132+4*b+i}, v{132+4*b+i}, v141, vcc""")
        a("    v_max_f32 v140, v128, v129")
        for i in range(2, 12):
            a(f"    v_max_f32 v140, v140, v{128+i}")
        a("""    ds_bpermute_b32 v141, v14, v140
    s_waitcnt lgkmcnt(0)
    v_max_f32 v140, v140, v141
    ds_bpermute_b32 v141, v15, v140
    s_waitcnt lgkmcnt(0)
    v_max_f32 v140, v140, v141
    v_mov_b32 v142, 0""")
        for i in range(12):
            a(f"""    v_sub_f32 v{128+i}, v{128+i}, v140
    v_mul_f32 v{128+i}, s56, v{128+i}
    v_exp_f32 v{128+i}, v{128+i}
    s_nop 0
    v_add_f32 v142, v142, v{128+i}""")
        a("""    ds_bpermute_b32 v141, v14, v142
    s_waitcnt lgkmcnt(0)
    v_add_f32 v142, v142, v141
    ds_bpermute_b32 v141, v15, v142
    s_waitcnt lgkmcnt(0)
    v_add_f32 v142, v142, v141
    v_rcp_f32 v142, v142
    s_nop 0""")
        for i in range(12):
            a(f"    v_mul_f32 v{128+i}, v{128+i}, v142")
        a("""    v_cvt_pk_bf16_f32 v144, v128, v129
    v_cvt_pk_bf16_f32 v145, v130, v131
    v_cvt_pk_bf16_f32 v146, v132, v133
    v_cvt_pk_bf16_f32 v147, v134, v135
    v_cvt_pk_bf16_f32 v148, v136, v137
    v_cvt_pk_bf16_f32 v149, v138, v139
    v_mov_b32 v150, 0
    v_mov_b32 v151, 0""")
        for eb in range(8):
            a(f"""    ds_read_b64_tr_b16 v[152:153], v12 offset:{eb*32}
    ds_read_b64_tr_b16 v[154:155], v12 offset:{eb*32 + 16*V_RS}
    ds_read_b64_tr_b16 v[156:157], v12 offset:{eb*32 + 32*V_RS}
    ds_read_b64_tr_b16 v[158:159], v12 offset:{eb*32 + 48*V_RS}
    v_mov_b32 v160, 0
    v_mov_b32 v161, 0
    v_mov_b32 v162, 0
    v_mov_b32 v163, 0
    s_waitcnt lgkmcnt(0)
    s_nop 1
    v_mfma_f32_16x16x32_bf16 v[160:163], v[152:155], v[144:147], v[160:163]
    v_mfma_f32_16x16x32_bf16 v[160:163], v[156:159], v[148:151], v[160:163]
    s_nop 7
    s_nop 1
    v_cvt_pk_bf16_f32 v164, v160, v161
    v_cvt_pk_bf16_f32 v165, v162, v163
    s_add_u32 s57, s54, {WS_O + qb*16*8192 + eb*32}
    buffer_store_dwordx2 v[164:165], v16, s[8:11], s57 offen""")
    a("""A_done:
    s_endpgm""")
    return kd(name, 168)


def gen_gemm2(a):
    name = "gemm2_kernel"
    kernel_begin(a, name)
    a(f"""
    s_cmp_ge_u32 s2, 128
    s_cbranch_scc1 G2_done
    s_load_dwordx2 s[4:5], s[0:1], {KARG['ws']}
    s_load_dwordx2 s[6:7], s[0:1], {KARG['wo']}
    s_load_dwordx2 s[22:23], s[0:1], {KARG['w2']}
    s_load_dwordx2 s[26:27], s[0:1], {KARG['x']}
    s_load_dwordx2 s[28:29], s[0:1], {KARG['b2']}
    s_load_dwordx2 s[36:37], s[0:1], {KARG['out']}
    s_and_b32 s50, s2, 15               ; mt
    s_lshr_b32 s51, s2, 4               ; nt""")
    G.gemm_addr_setup(a, 4096, 1024)
    a("    s_waitcnt lgkmcnt(0)")
    sadd64(a, 16, 17, 4, 5, WS_O)
    srd(a, 8, 16, 17, 16 * MB)
    srd(a, 12, 6, 7, 8 * MB)
    a("""    s_lshl_b32 s55, s50, 20            ; mt*128*8192
    s_lshl_b32 s56, s51, 8""")
    for i in range(4):
        a(f"    s_add_u32 s{40+i}, s55, {i*32*8192}")
        a(f"    s_add_u32 s{44+i}, s56, {i*16*1024*2}")
    G.gemm_zero_acc(a)
    G.gemm_kloop(a, 64, 1024)
    G.gemm_addr_setup(a, 3584, 1024)
    sadd64(a, 16, 17, 4, 5, WS_H1)
    srd(a, 8, 16, 17, 2048 * 3584 * 2)
    srd(a, 12, 22, 23, 3584 * 1024 * 2)
    a(f"""    s_mul_i32 s55, s50, {128*3584*2}
    s_lshl_b32 s56, s51, 8""")
    for i in range(4):
        a(f"    s_add_u32 s{40+i}, s55, {i*32*3584*2}")
        a(f"    s_add_u32 s{44+i}, s56, {i*16*1024*2}")
    G.gemm_kloop(a, 56, 1024)
    G.gemm_epi_coords(a)
    srd(a, 16, 36, 37, 4 * MB)
    srd(a, 20, 26, 27, 4 * MB)
    srd(a, 24, 28, 29, 2048)
    a("""    s_lshl_b32 s55, s50, 7
    v_add_u32 v20, s55, v20
    s_lshl_b32 s56, s51, 7
    v_add_u32 v21, s56, v21
    v_lshlrev_b32 v20, 11, v20          ; m*2048
    v_lshlrev_b32 v21, 1, v21
    v_add_u32 v22, v20, v21""")
    for nb in range(2):
        for g in range(4):
            a(f"    buffer_load_dwordx2 v[{32+16*nb+4*g}:{33+16*nb+4*g}], v21, s[24:27], 0 offen offset:{(nb*32+8*g)*2}")
    a("    s_waitcnt vmcnt(0)")
    for nb in range(2):
        for g in range(4):
            b = 32 + 16 * nb + 4 * g
            a(f"""    v_and_b32 v{b+3}, 0xffff0000, v{b+1}
    v_lshlrev_b32 v{b+2}, 16, v{b+1}
    v_and_b32 v{b+1}, 0xffff0000, v{b}
    v_lshlrev_b32 v{b}, 16, v{b}""")
    for nb in range(2):
        for mb in range(2):
            d = 128 + (nb * 2 + mb) * 16
            for g in range(4):
                b = 32 + 16 * nb + 4 * g
                a(f"""    v_add_u32 v23, {mb*32*2048 + (nb*32 + 8*g)*2}, v22
    buffer_load_dwordx2 v[26:27], v23, s[20:23], 0 offen
    s_waitcnt vmcnt(0)
    v_lshlrev_b32 v28, 16, v26
    v_and_b32 v29, 0xffff0000, v26
    v_lshlrev_b32 v30, 16, v27
    v_and_b32 v31, 0xffff0000, v27
    v_add_f32 v28, v28, v{b}
    v_add_f32 v29, v29, v{b+1}
    v_add_f32 v30, v30, v{b+2}
    v_add_f32 v31, v31, v{b+3}
    v_add_f32 v28, v28, v{d+4*g}
    v_add_f32 v29, v29, v{d+4*g+1}
    v_add_f32 v30, v30, v{d+4*g+2}
    v_add_f32 v31, v31, v{d+4*g+3}
    v_cvt_pk_bf16_f32 v24, v28, v29
    v_cvt_pk_bf16_f32 v25, v30, v31
    buffer_store_dwordx2 v[24:25], v23, s[16:19], 0 offen""")
    a("""G2_done:
    s_endpgm""")
    return kd(name, 192)
```

```python
import sys

NAME = "parallel_sum__memory_aug_recurrent_mem_tr__dense_activation_gelu__prompt"

MB = 1 << 20
WS_XN = 0
WS_Q = 4 * MB
WS_K = 20 * MB
WS_V = 36 * MB
WS_H1 = 52 * MB
WS_O = 68 * MB
WS_KM = 84 * MB
WS_VM = 88 * MB
WS_PA = 92 * MB
WS_PB = 100 * MB
WS_FA = 104 * MB
WS_FB = 104 * MB + 65536

KARG = dict(x=0, mem0=8, wq=16, wk=24, wv=32, wo=40, seg=48, bx=56, w1=64, b1=72, w2=80, b2=88,
            out=96, dbg=104, ws=112)


class Asm:
    def __init__(self):
        self.lines = []
        self.lbl = 0

    def __call__(self, s):
        for l in s.strip("\n").split("\n"):
            self.lines.append(l)

    def label(self, base="L"):
        self.lbl += 1
        return f"{base}_{self.lbl}"

    def text(self):
        return "\n".join(self.lines) + "\n"


def kernel_begin(a, name):
    a(f"""
.globl {name}
.p2align 8
.type {name},@function
{name}:""")


def kd(name, vgpr, sgpr=102, agpr=0):
    acc = (vgpr + 3) // 4 * 4
    return f""".amdhsa_kernel {name}
  .amdhsa_next_free_vgpr {acc + agpr if agpr else vgpr}
  .amdhsa_next_free_sgpr {sgpr}
  .amdhsa_accum_offset {acc}
  .amdhsa_group_segment_fixed_size 0
  .amdhsa_kernarg_size 120
  .amdhsa_user_sgpr_count 2
  .amdhsa_user_sgpr_kernarg_segment_ptr 1
  .amdhsa_system_sgpr_workgroup_id_x 1
.end_amdhsa_kernel
"""


def srd(a, d, lo, hi, size):
    a(f"""    s_mov_b32 s{d}, s{lo}
    s_and_b32 s{d+1}, s{hi}, 0xffff
    s_mov_b32 s{d+2}, {size}
    s_mov_b32 s{d+3}, 0x00020000""")


def sadd64(a, dlo, dhi, slo, shi, off):
    a(f"""    s_add_u32 s{dlo}, s{slo}, {off}
    s_addc_u32 s{dhi}, s{shi}, 0""")
```

```python
from common import *

QKV_RS = 784
MEM_RS = 272
V_RS = 288
L_QKV = 0
L_MEM = L_QKV + 16 * QKV_RS
L_O = L_MEM + 16 * MEM_RS
L_V = L_O + 16 * MEM_RS
L_KX = L_V + 64 * V_RS
L_TMP = L_KX + 32 * MEM_RS
REC_LDS = L_TMP + 8192


def gen_rec(a):
    name = "rec_kernel"
    kernel_begin(a, name)
    a(f"""
    s_cmp_ge_u32 s2, 256
    s_cbranch_scc1 R_done
    s_load_dwordx2 s[4:5], s[0:1], {KARG['ws']}
    s_load_dwordx2 s[16:17], s[0:1], {KARG['wq']}
    s_load_dwordx2 s[20:21], s[0:1], {KARG['wk']}
    s_load_dwordx2 s[24:25], s[0:1], {KARG['wv']}
    s_load_dwordx2 s[28:29], s[0:1], {KARG['wo']}
    s_load_dwordx2 s[32:33], s[0:1], {KARG['mem0']}
    s_and_b32 s50, s2, 31               ; h
    s_lshr_b32 s51, s2, 5               ; j
    v_lshrrev_b32 v1, 6, v0             ; wave w
    v_and_b32 v2, 63, v0                ; lane l
    v_and_b32 v3, 15, v2                ; l%16
    v_lshrrev_b32 v4, 4, v2             ; g = l/16
    s_nop 0
    v_readfirstlane_b32 s52, v1
    s_waitcnt lgkmcnt(0)""")
    srd(a, 8, 4, 5, 256 * MB)
    srd(a, 16, 16, 17, 8 * MB)
    srd(a, 20, 20, 21, 8 * MB)
    srd(a, 24, 24, 25, 8 * MB)
    srd(a, 28, 28, 29, 8 * MB)
    srd(a, 32, 32, 33, 16384)
    a(f"""    ; zero whole LDS area [0, {L_KX}) : 512 threads x 16B x 5
    v_mov_b32 v128, 0
    v_mov_b32 v129, 0
    v_mov_b32 v130, 0
    v_mov_b32 v131, 0
    v_lshlrev_b32 v5, 4, v0""")
    for i in range(5):
        a(f"    ds_write_b128 v5, v[128:131] offset:{i*8192}")
    a("""    ; per-lane row offset: (128j + 8g) rows * 8192B ; col: (h*128 + l%16)*2
    s_lshl_b32 s53, s51, 20             ; 128j*8192
    v_lshlrev_b32 v6, 16, v4            ; 8g*8192
    v_add_u32 v6, s53, v6
    s_lshl_b32 s54, s50, 8              ; h*256
    v_lshlrev_b32 v7, 1, v3
    v_add_u32 v6, v6, v7
    v_add_u32 v6, s54, v6""")
    for t in range(3):
        a(f"""    s_mul_i32 s55, s52, 3
    s_add_u32 s55, s55, {t}
    s_lshr_b32 s56, s55, 3              ; matrix
    s_and_b32 s57, s55, 7               ; colblk
    s_lshl_b32 s57, s57, 5              ; *16*2 bytes""")
        for m, sr in enumerate((16, 20, 24)):
            L = a.label("RW")
            a(f"    s_cmp_lg_u32 s56, {m}\n    s_cbranch_scc1 {L}")
            for ks in range(4):
                base = 16 + (t * 4 + ks) * 4
                for e in range(8):
                    a(f"    s_add_u32 s58, s57, {(32*ks+e)*8192}")
                    a(f"    buffer_load_ushort v{128+e}, v6, s[{sr}:{sr+3}], s58 offen")
                a("    s_waitcnt vmcnt(0)")
                for p in range(4):
                    a(f"    v_lshl_or_b32 v{base+p}, v{129+2*p}, 16, v{128+2*p}")
            a(f"{L}:")
    a("""    s_lshl_b32 s55, s50, 18             ; h*128*2048
    v_lshlrev_b32 v6, 14, v4            ; 8g*2048
    v_add_u32 v6, s55, v6
    s_lshl_b32 s56, s51, 8              ; 128j*2
    s_lshl_b32 s57, s52, 5              ; 16w*2
    s_add_u32 s56, s56, s57
    v_add_u32 v6, s56, v6
    v_lshlrev_b32 v7, 1, v3
    v_add_u32 v6, v6, v7""")
    for ks in range(4):
        base = 64 + ks * 4
        for e in range(8):
            a(f"    s_mov_b32 s58, {(32*ks+e)*2048}")
            a(f"    buffer_load_ushort v{128+e}, v6, s[28:31], s58 offen")
        a("    s_waitcnt vmcnt(0)")
        for p in range(4):
            a(f"    v_lshl_or_b32 v{base+p}, v{129+2*p}, 16, v{128+2*p}")
    a(f"""    s_waitcnt lgkmcnt(0)
    s_barrier
    v_cmp_gt_u32 vcc, 128, v0
    s_and_saveexec_b64 s[34:35], vcc
    s_cbranch_execz R_m0done
    v_lshrrev_b32 v6, 4, v0             ; row
    v_and_b32 v7, 15, v0                ; chunk
    v_lshlrev_b32 v8, 11, v6
    v_lshlrev_b32 v9, 4, v7
    v_add_u32 v8, v8, v9
    s_lshl_b32 s55, s51, 8
    buffer_load_dwordx4 v[128:131], v8, s[32:35], s55 offen
    v_mul_u32_u24 v8, {MEM_RS}, v6
    v_add_u32 v8, v8, v9
    s_waitcnt vmcnt(0)
    ds_write_b128 v8, v[128:131] offset:{L_MEM}
R_m0done:
    s_mov_b64 exec, s[34:35]
    ; v8 : B_op read addr for memS/oS rows:  (l%16)*RS + g*16
    v_mul_u32_u24 v8, {MEM_RS}, v3
    v_lshlrev_b32 v9, 4, v4
    v_add_u32 v8, v8, v9
    ; v9 : qkvS read addr : (l%16)*QKV_RS + g*16
    v_mul_u32_u24 v9, {QKV_RS}, v3
    v_lshlrev_b32 v10, 4, v4
    v_add_u32 v9, v9, v10
    ; v10: PA store offset within WG block: row(l%16)*1536 + g*16
    v_mul_u32_u24 v10, 1536, v3
    v_lshlrev_b32 v11, 4, v4
    v_add_u32 v10, v10, v11
    v_lshlrev_b32 v11, 9, v3
    v_lshlrev_b32 v12, 4, v4
    v_add_u32 v11, v11, v12
    s_lshl_b32 s55, s52, 6
    v_add_u32 v11, s55, v11
    ; v12: V tr-read addr: (4g + r)*V_RS + (16w + 4c)*2 ; li=l%16, r=li/4, c=li%4
    v_lshrrev_b32 v13, 2, v3
    v_lshlrev_b32 v12, 2, v4
    v_add_u32 v12, v12, v13
    v_mul_u32_u24 v12, {V_RS}, v12
    v_and_b32 v13, 3, v3
    v_lshlrev_b32 v13, 3, v13
    v_add_u32 v12, v12, v13
    s_lshl_b32 s55, s52, 5
    v_add_u32 v12, s55, v12
    ; v13: oS write addr: (l%16)*MEM_RS + (16w+4g)*2
    v_mul_u32_u24 v13, {MEM_RS}, v3
    v_lshlrev_b32 v14, 3, v4
    v_add_u32 v13, v13, v14
    v_add_u32 v13, s55, v13
    v_xor_b32 v14, 16, v2
    v_lshlrev_b32 v14, 2, v14
    v_xor_b32 v15, 32, v2
    v_lshlrev_b32 v15, 2, v15
    s_mov_b32 s60, 0                    ; step
R_step:
    s_and_b32 s61, s60, 1               ; buf
    ; ---- stage Kx, Vx (rows 32s..32s+31, cols h*128..) into LDS : thread t: row=t/16, chunk=t%16
    v_lshrrev_b32 v112, 4, v0
    v_and_b32 v113, 15, v0
    v_lshlrev_b32 v114, 13, v112
    v_lshlrev_b32 v115, 4, v113
    v_add_u32 v114, v114, v115
    s_lshl_b32 s55, s60, 18             ; 32s*8192
    s_lshl_b32 s56, s50, 8
    s_add_u32 s55, s55, s56
    s_add_u32 s56, s55, {WS_K}
    s_add_u32 s57, s55, {WS_V}
    buffer_load_dwordx4 v[116:119], v114, s[8:11], s56 offen
    buffer_load_dwordx4 v[120:123], v114, s[8:11], s57 offen
    v_mul_u32_u24 v114, {MEM_RS}, v112
    v_add_u32 v114, v114, v115
    v_mul_u32_u24 v124, {V_RS}, v112
    v_add_u32 v124, v124, v115
    s_waitcnt lgkmcnt(0)""")
    for ks in range(4):
        a(f"    ds_read_b128 v[{96+4*ks}:{99+4*ks}], v8 offset:{L_MEM + ks*64}")
    a(f"""    s_waitcnt vmcnt(0)
    ds_write_b128 v114, v[116:119] offset:{L_KX}
    ds_write_b128 v124, v[120:123] offset:{L_V + 16*V_RS}
    s_waitcnt lgkmcnt(0)""")
    for t in range(3):
        for i in range(4):
            a(f"    v_mov_b32 v{128+4*t+i}, 0")
    a("    s_nop 1")
    for ks in range(4):
        for t in range(3):
            a(f"    v_mfma_f32_16x16x32_bf16 v[{128+4*t}:{131+4*t}], v[{16+(t*4+ks)*4}:{19+(t*4+ks)*4}], v[{96+4*ks}:{99+4*ks}], v[{128+4*t}:{131+4*t}]")
    a(f"""    s_lshl_b32 s55, s61, 5
    s_add_u32 s55, s55, s50             ; buf*32+h
    s_lshl_b32 s55, s55, 3
    s_add_u32 s55, s55, s51             ; *8 + j
    s_mul_i32 s55, s55, 12288
    s_add_u32 s55, s55, {WS_PA}
    s_mul_i32 s56, s52, 192             ; 3w blocks * 64B
    s_add_u32 s55, s55, s56
    v_cmp_gt_u32 vcc, 8, v3
    s_nop 4
    s_and_saveexec_b64 s[34:35], vcc""")
    for t in range(3):
        a(f"    buffer_store_dwordx4 v[{128+4*t}:{131+4*t}], v10, s[8:11], s55 offen offset:{t*64} sc1")
    a(f"""    s_mov_b64 exec, s[34:35]
    s_waitcnt vmcnt(0)
    s_barrier
    s_add_u32 s62, s60, 1               ; target
    s_cmp_lg_u32 s52, 0
    s_cbranch_scc1 R_pa_done
    s_lshl_b32 s55, s50, 3
    s_add_u32 s56, s55, s51
    s_lshl_b32 s56, s56, 7
    s_add_u32 s56, s56, {WS_FA}
    v_mov_b32 v112, s62
    v_mov_b32 v113, 0
    v_cmp_gt_u32 vcc, 1, v2
    s_and_saveexec_b64 s[34:35], vcc
    buffer_store_dword v112, v113, s[8:11], s56 offen sc1
    s_mov_b64 exec, s[34:35]
    v_cmp_gt_u32 vcc, 8, v2
    s_and_saveexec_b64 s[34:35], vcc
    s_lshl_b32 s56, s55, 7
    s_add_u32 s56, s56, {WS_FA}
    v_lshlrev_b32 v113, 7, v2
R_pollA:
    buffer_load_dword v112, v113, s[8:11], s56 offen sc1
    s_waitcnt vmcnt(0)
    v_cmp_gt_u32 vcc, s62, v112
    s_cbranch_vccnz R_pollA
    s_mov_b64 exec, s[34:35]
R_pa_done:
    s_barrier
    ; ---- gather A
    s_lshl_b32 s55, s61, 5
    s_add_u32 s55, s55, s50
    s_mul_i32 s55, s55, {8*12288}
    s_add_u32 s55, s55, {WS_PA}
    v_lshlrev_b32 v112, 4, v0           ; chunk t * 16B""")
    for jj in range(8):
        a(f"    s_add_u32 s56, s55, {jj*12288}")
        a(f"    buffer_load_dwordx4 v[{128+4*jj}:{131+4*jj}], v112, s[8:11], s56 offen sc1")
    a("""    v_cmp_gt_u32 vcc, 256, v0
    s_and_saveexec_b64 s[34:35], vcc""")
    for jj in range(8):
        a(f"    s_add_u32 s56, s55, {jj*12288 + 8192}")
        a(f"    buffer_load_dwordx4 v[{160+4*jj}:{163+4*jj}], v112, s[8:11], s56 offen sc1")
    a("""    s_mov_b64 exec, s[34:35]
    s_waitcnt vmcnt(0)""")
    for base in (128, 160):
        for jj in range(1, 8):
            for c in range(4):
                a(f"    v_add_f32 v{base+c}, v{base+c}, v{base+4*jj+c}")
    a(f"""    v_cvt_pk_bf16_f32 v128, v128, v129
    v_cvt_pk_bf16_f32 v129, v130, v131
    v_cvt_pk_bf16_f32 v160, v160, v161
    v_cvt_pk_bf16_f32 v161, v162, v163
    ; row = t*43691 >> 22  (t/96)
    s_mov_b32 s56, 43691
    v_mul_lo_u32 v112, v0, s56
    v_lshrrev_b32 v112, 22, v112
    v_mul_u32_u24 v113, 96, v112
    v_sub_u32 v113, v0, v113            ; col4
    v_mul_u32_u24 v114, {QKV_RS}, v112
    v_lshlrev_b32 v115, 3, v113
    v_add_u32 v114, v114, v115
    ds_write_b64 v114, v[128:129] offset:{L_QKV}
    v_add_u32 v116, 512, v0
    v_mul_lo_u32 v117, v116, s56
    v_lshrrev_b32 v117, 22, v117
    v_mul_u32_u24 v118, 96, v117
    v_sub_u32 v118, v116, v118
    v_mul_u32_u24 v119, {QKV_RS}, v117
    v_lshlrev_b32 v120, 3, v118
    v_add_u32 v119, v119, v120
    v_cmp_gt_u32 vcc, 256, v0
    s_and_saveexec_b64 s[34:35], vcc
    ds_write_b64 v119, v[160:161] offset:{L_QKV}
    s_mov_b64 exec, s[34:35]
    v_cmp_le_u32 vcc, 64, v113
    s_and_saveexec_b64 s[34:35], vcc
    v_mul_u32_u24 v121, {V_RS}, v112
    v_subrev_u32 v122, 64, v113
    v_lshlrev_b32 v122, 3, v122
    v_add_u32 v121, v121, v122
    ds_write_b64 v121, v[128:129] offset:{L_V}
    s_mov_b64 exec, s[34:35]
    v_cmp_le_u32 vcc, 64, v118
    v_cmp_gt_u32 s[36:37], 256, v0
    s_and_b64 vcc, vcc, s[36:37]
    s_and_saveexec_b64 s[34:35], vcc
    v_mul_u32_u24 v121, {V_RS}, v117
    v_subrev_u32 v122, 64, v118
    v_lshlrev_b32 v122, 3, v122
    v_add_u32 v121, v121, v122
    ds_write_b64 v121, v[160:161] offset:{L_V}
    s_mov_b64 exec, s[34:35]
    s_cmp_lg_u32 s51, 0
    s_cbranch_scc1 R_nokm
    s_lshl_b32 s55, s60, 16
    s_lshl_b32 s56, s50, 8
    s_add_u32 s55, s55, s56
    s_add_u32 s55, s55, {WS_KM}
    v_cmp_le_u32 vcc, 32, v113
    s_and_saveexec_b64 s[34:35], vcc
    v_lshlrev_b32 v121, 13, v112
    v_subrev_u32 v122, 32, v113
    v_lshlrev_b32 v122, 3, v122
    v_cmp_le_u32 vcc, 64, v113
    v_mov_b32 v123, 0
    v_mov_b32 v125, {4*MB - 256}
    v_cndmask_b32 v123, v123, v125, vcc
    v_add_u32 v121, v121, v122
    v_add_u32 v121, v121, v123
    buffer_store_dwordx2 v[128:129], v121, s[8:11], s55 offen
    s_mov_b64 exec, s[34:35]
    v_cmp_le_u32 vcc, 32, v118
    s_and_b64 vcc, vcc, s[36:37]
    s_and_saveexec_b64 s[34:35], vcc
    v_lshlrev_b32 v121, 13, v117
    v_subrev_u32 v122, 32, v118
    v_lshlrev_b32 v122, 3, v122
    v_cmp_le_u32 vcc, 64, v118
    v_mov_b32 v123, 0
    v_mov_b32 v125, {4*MB - 256}
    v_cndmask_b32 v123, v123, v125, vcc
    v_add_u32 v121, v121, v122
    v_add_u32 v121, v121, v123
    buffer_store_dwordx2 v[160:161], v121, s[8:11], s55 offen
    s_mov_b64 exec, s[34:35]
R_nokm:
    s_waitcnt lgkmcnt(0)
    s_barrier
    ; ---- attention: Q frags v[96:111], Kmem frags v[112:127]""")
    for ks in range(4):
        a(f"    ds_read_b128 v[{96+4*ks}:{99+4*ks}], v9 offset:{L_QKV + ks*64}")
        a(f"    ds_read_b128 v[{112+4*ks}:{115+4*ks}], v9 offset:{L_QKV + 256 + ks*64}")
    for b in range(2):
        for ks in range(4):
            a(f"    ds_read_b128 v[{144+16*b+4*ks}:{147+16*b+4*ks}], v8 offset:{L_KX + b*16*MEM_RS + ks*64}")
    for i in range(12):
        a(f"    v_mov_b32 v{128+i}, 0")
    a("    s_waitcnt lgkmcnt(0)\n    s_nop 1")
    for ks in range(4):
        a(f"    v_mfma_f32_16x16x32_bf16 v[128:131], v[{112+4*ks}:{115+4*ks}], v[{96+4*ks}:{99+4*ks}], v[128:131]")
        a(f"    v_mfma_f32_16x16x32_bf16 v[132:135], v[{144+4*ks}:{147+4*ks}], v[{96+4*ks}:{99+4*ks}], v[132:135]")
        a(f"    v_mfma_f32_16x16x32_bf16 v[136:139], v[{160+4*ks}:{163+4*ks}], v[{96+4*ks}:{99+4*ks}], v[136:139]")
    a("    s_mov_b32 s55, 0x3db504f3        ; 128^-0.5\n    s_mov_b32 s56, 0x3fb8aa3b  ; log2e\n    s_nop 6")
    for i in range(0, 12, 2):
        a(f"""    v_cvt_pk_bf16_f32 v140, v{128+i}, v{129+i}
    v_lshlrev_b32 v{128+i}, 16, v140
    v_and_b32 v{129+i}, 0xffff0000, v140
    v_mul_f32 v{128+i}, s55, v{128+i}
    v_mul_f32 v{129+i}, s55, v{129+i}
    v_cvt_pk_bf16_f32 v140, v{128+i}, v{129+i}
    v_lshlrev_b32 v{128+i}, 16, v140
    v_and_b32 v{129+i}, 0xffff0000, v140""")
    a("""    v_mov_b32 v141, 0xce6e6b28          ; -1e9
    v_cmp_le_u32 vcc, 2, v4""")
    for i in range(4):
        a(f"    v_cndmask_b32 v{128+i}, v{128+i}, v141, vcc")
    a("    v_max_f32 v140, v128, v129")
    for i in range(2, 12):
        a(f"    v_max_f32 v140, v140, v{128+i}")
    a("""    ds_bpermute_b32 v141, v14, v140
    s_waitcnt lgkmcnt(0)
    v_max_f32 v140, v140, v141
    ds_bpermute_b32 v141, v15, v140
    s_waitcnt lgkmcnt(0)
    v_max_f32 v140, v140, v141
    v_mov_b32 v142, 0""")
    for i in range(12):
        a(f"""    v_sub_f32 v{128+i}, v{128+i}, v140
    v_mul_f32 v{128+i}, s56, v{128+i}
    v_exp_f32 v{128+i}, v{128+i}
    s_nop 0
    v_add_f32 v142, v142, v{128+i}""")
    a("""    ds_bpermute_b32 v141, v14, v142
    s_waitcnt lgkmcnt(0)
    v_add_f32 v142, v142, v141
    ds_bpermute_b32 v141, v15, v142
    s_waitcnt lgkmcnt(0)
    v_add_f32 v142, v142, v141
    v_rcp_f32 v142, v142
    s_nop 0""")
    for i in range(12):
        a(f"    v_mul_f32 v{128+i}, v{128+i}, v142")
    a("""    v_cvt_pk_bf16_f32 v144, v128, v129
    v_cvt_pk_bf16_f32 v145, v130, v131
    v_cvt_pk_bf16_f32 v146, v132, v133
    v_cvt_pk_bf16_f32 v147, v134, v135
    v_cvt_pk_bf16_f32 v148, v136, v137
    v_cvt_pk_bf16_f32 v149, v138, v139
    v_mov_b32 v150, 0
    v_mov_b32 v151, 0""")
    a(f"""    ds_read_b64_tr_b16 v[152:153], v12 offset:{L_V}
    ds_read_b64_tr_b16 v[154:155], v12 offset:{L_V + 16*V_RS}
    ds_read_b64_tr_b16 v[156:157], v12 offset:{L_V + 32*V_RS}
    ds_read_b64_tr_b16 v[158:159], v12 offset:{L_V + 48*V_RS}
    v_mov_b32 v160, 0
    v_mov_b32 v161, 0
    v_mov_b32 v162, 0
    v_mov_b32 v163, 0
    s_waitcnt lgkmcnt(0)
    s_nop 1
    v_mfma_f32_16x16x32_bf16 v[160:163], v[152:155], v[144:147], v[160:163]
    v_mfma_f32_16x16x32_bf16 v[160:163], v[156:159], v[148:151], v[160:163]
    s_nop 7
    s_nop 1
    v_cvt_pk_bf16_f32 v164, v160, v161
    v_cvt_pk_bf16_f32 v165, v162, v163
    ds_write_b64 v13, v[164:165] offset:{L_O}
    s_waitcnt lgkmcnt(0)
    s_barrier""")
    for ks in range(4):
        a(f"    ds_read_b128 v[{96+4*ks}:{99+4*ks}], v8 offset:{L_O + ks*64}")
    a("""    v_mov_b32 v128, 0
    v_mov_b32 v129, 0
    v_mov_b32 v130, 0
    v_mov_b32 v131, 0
    s_waitcnt lgkmcnt(0)
    s_nop 1""")
    for ks in range(4):
        a(f"    v_mfma_f32_16x16x32_bf16 v[128:131], v[{64+4*ks}:{67+4*ks}], v[{96+4*ks}:{99+4*ks}], v[128:131]")
    a(f"""    s_lshl_b32 s55, s61, 3
    s_add_u32 s55, s55, s51             ; buf*8+j
    s_lshl_b32 s55, s55, 5
    s_add_u32 s55, s55, s50             ; *32+h
    s_lshl_b32 s55, s55, 12
    s_add_u32 s55, s55, {WS_PB}
    v_cmp_gt_u32 vcc, 8, v3
    s_nop 4
    s_and_saveexec_b64 s[34:35], vcc
    buffer_store_dwordx4 v[128:131], v11, s[8:11], s55 offen sc1
    s_mov_b64 exec, s[34:35]
    s_waitcnt vmcnt(0)
    s_barrier
    s_cmp_lg_u32 s52, 0
    s_cbranch_scc1 R_pb_done
    s_lshl_b32 s55, s51, 5
    s_add_u32 s56, s55, s50
    s_lshl_b32 s56, s56, 7
    s_add_u32 s56, s56, {WS_FB}
    v_mov_b32 v112, s62
    v_mov_b32 v113, 0
    v_cmp_gt_u32 vcc, 1, v2
    s_and_saveexec_b64 s[34:35], vcc
    buffer_store_dword v112, v113, s[8:11], s56 offen sc1
    s_mov_b64 exec, s[34:35]
    v_cmp_gt_u32 vcc, 32, v2
    s_and_saveexec_b64 s[34:35], vcc
    s_lshl_b32 s56, s55, 7
    s_add_u32 s56, s56, {WS_FB}
    v_lshlrev_b32 v113, 7, v2
R_pollB:
    buffer_load_dword v112, v113, s[8:11], s56 offen sc1
    s_waitcnt vmcnt(0)
    v_cmp_gt_u32 vcc, s62, v112
    s_cbranch_vccnz R_pollB
    s_mov_b64 exec, s[34:35]
R_pb_done:
    s_barrier
    s_lshl_b32 s55, s61, 3
    s_add_u32 s55, s55, s51
    s_lshl_b32 s55, s55, 17             ; *32*4096
    s_add_u32 s55, s55, {WS_PB}
    v_and_b32 v112, 255, v0
    v_lshlrev_b32 v112, 4, v112
    v_lshrrev_b32 v113, 8, v0
    v_lshlrev_b32 v113, 16, v113        ; half*16*4096
    v_add_u32 v112, v112, v113""")
    for hh in range(16):
        a(f"    s_add_u32 s56, s55, {hh*4096}")
        a(f"    buffer_load_dwordx4 v[{128+4*hh}:{131+4*hh}], v112, s[8:11], s56 offen sc1")
    a("    s_waitcnt vmcnt(0)")
    for hh in range(1, 16):
        for c in range(4):
            a(f"    v_add_f32 v{128+c}, v{128+c}, v{128+4*hh+c}")
    a(f"""    v_lshlrev_b32 v112, 4, v0
    ds_write_b128 v112, v[128:131] offset:{L_TMP}
    s_waitcnt lgkmcnt(0)
    s_barrier
    v_cmp_gt_u32 vcc, 256, v0
    s_and_saveexec_b64 s[34:35], vcc
    s_cbranch_execz R_gb_done
    ds_read_b128 v[132:135], v112 offset:{L_TMP + 4096}
    s_waitcnt lgkmcnt(0)
    v_add_f32 v128, v128, v132
    v_add_f32 v129, v129, v133
    v_add_f32 v130, v130, v134
    v_add_f32 v131, v131, v135
    v_cvt_pk_bf16_f32 v128, v128, v129
    v_cvt_pk_bf16_f32 v129, v130, v131
    ; chunk -> row = t/32, col4 = t%32
    v_lshrrev_b32 v113, 5, v0
    v_and_b32 v114, 31, v0
    v_mul_u32_u24 v113, {MEM_RS}, v113
    v_lshlrev_b32 v114, 3, v114
    v_add_u32 v113, v113, v114
    ds_write_b64 v113, v[128:129] offset:{L_MEM}
R_gb_done:
    s_mov_b64 exec, s[34:35]
    s_waitcnt lgkmcnt(0)
    s_barrier
    s_add_u32 s60, s60, 1
    s_cmp_lt_u32 s60, 64
    s_cbranch_scc1 R_step
R_done:
    s_endpgm""")
    return kd(name, 192)
```

```python
import sys
from common import *
from rec import gen_rec, REC_LDS
from att import gen_att, gen_gemm2, ATT_LDS

def gen_ln(a):
    name = "ln_kernel"
    kernel_begin(a, name)
    a(f"""
    s_cmp_ge_u32 s2, 512
    s_cbranch_scc1 LN_done
    s_load_dwordx2 s[4:5], s[0:1], {KARG['x']}
    s_load_dwordx2 s[6:7], s[0:1], {KARG['ws']}
    v_lshrrev_b32 v1, 6, v0            ; wave
    v_and_b32 v2, 63, v0               ; lane
    s_lshl_b32 s3, s2, 2
    v_add_u32 v3, s3, v1               ; row
    v_lshlrev_b32 v3, 11, v3           ; row*2048
    v_lshlrev_b32 v4, 4, v2
    v_add_u32 v3, v3, v4
    v_xor_b32 v40, 1, v2
    v_lshlrev_b32 v40, 2, v40
    v_xor_b32 v41, 2, v2
    v_lshlrev_b32 v41, 2, v41
    v_xor_b32 v42, 4, v2
    v_lshlrev_b32 v42, 2, v42
    v_xor_b32 v43, 8, v2
    v_lshlrev_b32 v43, 2, v43
    v_xor_b32 v44, 16, v2
    v_lshlrev_b32 v44, 2, v44
    v_xor_b32 v45, 32, v2
    v_lshlrev_b32 v45, 2, v45
    s_waitcnt lgkmcnt(0)""")
    srd(a, 8, 4, 5, 4 * MB)
    srd(a, 12, 6, 7, 4 * MB)
    a("""
    buffer_load_dwordx4 v[4:7], v3, s[8:11], 0 offen
    buffer_load_dwordx4 v[8:11], v3, s[8:11], 0 offen offset:1024
    s_cmp_lg_u32 s2, 0
    s_cbranch_scc1 LN_noflag
    v_cmp_gt_u32 vcc, 64, v0
    s_and_saveexec_b64 s[20:21], vcc
    s_cbranch_execz LN_flagdone""")
    sadd64(a, 16, 17, 6, 7, WS_FA)
    srd(a, 24, 16, 17, 131072)
    a("    v_lshlrev_b32 v46, 7, v2\n    v_mov_b32 v47, 0")
    for i in range(8):
        a(f"    buffer_store_dword v47, v46, s[24:27], 0 offen\n    v_add_u32 v46, 0x2000, v46")
    a("""LN_flagdone:
    s_mov_b64 exec, s[20:21]
LN_noflag:
    s_waitcnt vmcnt(0)""")
    for i in range(8):
        a(f"    v_lshlrev_b32 v{16+2*i}, 16, v{4+i}\n    v_and_b32 v{17+2*i}, 0xffff0000, v{4+i}")
    a("    v_add_f32 v32, v16, v17")
    for i in range(18, 32):
        a(f"    v_add_f32 v32, v32, v{i}")

    def allreduce(v, t):
        for r in range(6):
            a(f"""    ds_bpermute_b32 v{t}, v{40+r}, v{v}
    s_waitcnt lgkmcnt(0)
    v_add_f32 v{v}, v{v}, v{t}""")
    allreduce(32, 33)
    a("    v_mul_f32 v32, 0x3a800000, v32")
    a("    v_mov_b32 v34, 0")
    for i in range(16, 32):
        a(f"    v_sub_f32 v35, v{i}, v32\n    v_fmac_f32 v34, v35, v35")
    allreduce(34, 33)
    a("""    v_mul_f32 v34, 0x3a800000, v34      ; var
    v_cvt_pk_bf16_f32 v36, v32, v34
    v_lshlrev_b32 v32, 16, v36          ; mean_bf
    v_and_b32 v34, 0xffff0000, v36      ; var_bf
    v_add_f32 v34, 0x3727c5ac, v34      ; + 1e-5
    v_cvt_pk_bf16_f32 v36, v34, v34
    v_lshlrev_b32 v34, 16, v36
    v_sqrt_f32 v34, v34
    s_nop 0
    v_cvt_pk_bf16_f32 v36, v34, v34
    v_lshlrev_b32 v34, 16, v36
    v_rcp_f32 v34, v34
    s_nop 0""")
    for i in range(8):
        x0, x1 = 16 + 2 * i, 17 + 2 * i
        a(f"""    v_sub_f32 v{x0}, v{x0}, v32
    v_sub_f32 v{x1}, v{x1}, v32
    v_cvt_pk_bf16_f32 v36, v{x0}, v{x1}
    v_lshlrev_b32 v{x0}, 16, v36
    v_and_b32 v{x1}, 0xffff0000, v36
    v_mul_f32 v{x0}, v{x0}, v34
    v_mul_f32 v{x1}, v{x1}, v34
    v_cvt_pk_bf16_f32 v{4+i}, v{x0}, v{x1}""")
    a("""    buffer_store_dwordx4 v[4:7], v3, s[12:15], 0 offen
    buffer_store_dwordx4 v[8:11], v3, s[12:15], 0 offen offset:1024
LN_done:
    s_endpgm""")
    return kd(name, 48)


LDSA_STRIDE = 144
LDSB_STRIDE = 320
LDSA_SZ = 128 * LDSA_STRIDE
LDSB_SZ = 64 * LDSB_STRIDE
LDSBUF = LDSA_SZ + LDSB_SZ


def gemm_addr_setup(a, lda, ldb):
    a(f"""
    v_lshrrev_b32 v1, 3, v0             ; t/8
    v_and_b32 v2, 7, v0                 ; t%8
    s_mov_b32 s30, {lda*2}
    v_mul_lo_u32 v10, v1, s30
    v_lshlrev_b32 v3, 4, v2
    v_add_u32 v10, v10, v3
    v_mul_u32_u24 v12, {LDSA_STRIDE}, v1
    v_add_u32 v12, v12, v3
    v_add_u32 v13, {LDSBUF}, v12
    v_lshrrev_b32 v1, 4, v0             ; t/16
    v_and_b32 v2, 15, v0
    s_mov_b32 s30, {ldb*2}
    v_mul_lo_u32 v11, v1, s30
    v_lshlrev_b32 v3, 4, v2
    v_add_u32 v11, v11, v3
    v_mul_u32_u24 v14, {LDSB_STRIDE}, v1
    v_add_u32 v14, v14, v3
    v_add_u32 v14, {LDSA_SZ}, v14
    v_add_u32 v15, {LDSBUF}, v14
    v_lshrrev_b32 v1, 6, v0             ; wave
    v_and_b32 v2, 63, v0                ; lane
    v_lshrrev_b32 v4, 1, v1             ; wm
    v_and_b32 v5, 1, v1                 ; wn
    v_and_b32 v6, 31, v2                ; l%32
    v_lshrrev_b32 v7, 5, v2             ; l/32
    v_lshlrev_b32 v8, 6, v4
    v_add_u32 v8, v8, v6                ; 64wm + l%32
    v_mul_u32_u24 v16, {LDSA_STRIDE}, v8
    v_lshlrev_b32 v9, 4, v7
    v_add_u32 v16, v16, v9
    v_add_u32 v17, {LDSBUF}, v16
    v_lshrrev_b32 v6, 4, v2             ; g = l/16
    v_and_b32 v7, 15, v2                ; li
    v_lshrrev_b32 v8, 2, v7             ; r
    v_and_b32 v9, 3, v7                 ; c
    v_lshrrev_b32 v20, 1, v6            ; g/2
    v_lshlrev_b32 v20, 3, v20
    v_add_u32 v20, v20, v8              ; 8*(g/2)+r
    v_mul_u32_u24 v18, {LDSB_STRIDE}, v20
    v_and_b32 v21, 1, v6                ; g%2
    v_lshlrev_b32 v21, 4, v21
    v_lshlrev_b32 v22, 2, v9
    v_add_u32 v21, v21, v22
    v_lshlrev_b32 v22, 6, v5
    v_add_u32 v21, v21, v22             ; col = 64wn+16(g%2)+4c
    v_lshlrev_b32 v21, 1, v21
    v_add_u32 v18, v18, v21
    v_add_u32 v18, {LDSA_SZ}, v18
    v_add_u32 v19, {LDSBUF}, v18""")


def gemm_issue_loads(a):
    for i in range(4):
        a(f"    buffer_load_dwordx4 v[{32+4*i}:{35+4*i}], v10, s[8:11], s{40+i} offen")
    for i in range(4):
        a(f"    buffer_load_dwordx4 v[{48+4*i}:{51+4*i}], v11, s[12:15], s{44+i} offen")


def gemm_advance(a, ldb):
    for i in range(4):
        a(f"    s_add_u32 s{40+i}, s{40+i}, 128")
    for i in range(4):
        a(f"    s_add_u32 s{44+i}, s{44+i}, {64*ldb*2}")


def gemm_stage_to_lds(a, buf):
    va = 12 + buf
    vb = 14 + buf
    for i in range(4):
        a(f"    ds_write_b128 v{va}, v[{32+4*i}:{35+4*i}] offset:{i*32*LDSA_STRIDE}")
    for i in range(4):
        a(f"    ds_write_b128 v{vb}, v[{48+4*i}:{51+4*i}] offset:{i*16*LDSB_STRIDE}")


def gemm_frag_reads(a, buf, kk, fs):
    va = 16 + buf
    vb = 18 + buf
    for mb in range(2):
        a(f"    ds_read_b128 v[{fs+4*mb}:{fs+4*mb+3}], v{va} offset:{mb*32*LDSA_STRIDE + kk*32}")
    for nb in range(2):
        for hf in range(2):
            a(f"    ds_read_b64_tr_b16 v[{fs+8+4*nb+2*hf}:{fs+9+4*nb+2*hf}], v{vb} offset:{kk*16*LDSB_STRIDE + hf*4*LDSB_STRIDE + nb*64}")


def gemm_mfmas(a, fs, acc):
    for nb in range(2):
        for mb in range(2):
            d = acc + (nb * 2 + mb) * 16
            a(f"    v_mfma_f32_32x32x16_bf16 v[{d}:{d+15}], v[{fs+8+4*nb}:{fs+11+4*nb}], v[{fs+4*mb}:{fs+4*mb+3}], v[{d}:{d+15}]")


def gemm_compute(a, buf, acc):
    gemm_frag_reads(a, buf, 0, 64)
    for kk in range(4):
        cur = 64 if kk % 2 == 0 else 80
        nxt = 80 if kk % 2 == 0 else 64
        if kk < 3:
            gemm_frag_reads(a, buf, kk + 1, nxt)
            a("    s_waitcnt lgkmcnt(6)")
        else:
            a("    s_waitcnt lgkmcnt(0)")
        gemm_mfmas(a, cur, acc)


def gemm_kloop(a, nsteps, ldb, acc=128):
    L = a.label("KL")
    gemm_issue_loads(a)
    gemm_advance(a, ldb)
    a("    s_waitcnt vmcnt(0)")
    gemm_stage_to_lds(a, 0)
    a("    s_waitcnt lgkmcnt(0)\n    s_barrier")
    a(f"    s_mov_b32 s48, {nsteps//2 - 1}")
    a(f"{L}:")
    gemm_issue_loads(a)
    gemm_advance(a, ldb)
    gemm_compute(a, 0, acc)
    a("    s_waitcnt vmcnt(0)")
    gemm_stage_to_lds(a, 1)
    a("    s_waitcnt lgkmcnt(0)\n    s_barrier")
    Ls = a.label("KS")
    a(f"    s_cmp_eq_u32 s48, 0\n    s_cbranch_scc1 {Ls}")
    gemm_issue_loads(a)
    gemm_advance(a, ldb)
    a(f"{Ls}:")
    gemm_compute(a, 1, acc)
    Le = a.label("KE")
    a(f"    s_cmp_eq_u32 s48, 0\n    s_cbranch_scc1 {Le}")
    a("    s_waitcnt vmcnt(0)")
    gemm_stage_to_lds(a, 0)
    a("    s_waitcnt lgkmcnt(0)\n    s_barrier")
    a(f"    s_sub_u32 s48, s48, 1\n    s_branch {L}")
    a(f"{Le}:")
    a("    s_barrier")


def gemm_zero_acc(a, acc=128):
    for i in range(64):
        a(f"    v_mov_b32 v{acc+i}, 0")


def gemm_epi_coords(a):
    a("""    v_lshrrev_b32 v1, 6, v0
    v_and_b32 v2, 63, v0
    v_lshrrev_b32 v4, 1, v1
    v_and_b32 v5, 1, v1
    v_and_b32 v6, 31, v2
    v_lshrrev_b32 v7, 5, v2
    v_lshlrev_b32 v20, 6, v4
    v_add_u32 v20, v20, v6
    v_lshlrev_b32 v21, 6, v5
    v_lshlrev_b32 v7, 2, v7
    v_add_u32 v21, v21, v7""")


def gen_gemm1(a):
    name = "gemm1_kernel"
    kernel_begin(a, name)
    a(f"""
    s_cmp_ge_u32 s2, {16*124}
    s_cbranch_scc1 G1_done
    s_load_dwordx2 s[4:5], s[0:1], {KARG['ws']}
    s_and_b32 s50, s2, 15               ; mt
    s_lshr_b32 s51, s2, 4               ; nt 0..123
    s_lshr_b32 s52, s51, 5              ; 0,1,2 -> q,k,v ; 3 -> w1
    s_lshl_b32 s53, s52, 3
    s_add_u32 s53, s53, {KARG['wq']}
    s_cmp_eq_u32 s52, 3
    s_cbranch_scc0 G1_sel
    s_mov_b32 s53, {KARG['w1']}
G1_sel:
    s_load_dwordx2 s[6:7], s[0:1], s53
    s_load_dwordx2 s[22:23], s[0:1], {KARG['b1']}
    s_and_b32 s54, s51, 31
    s_cmp_eq_u32 s52, 3
    s_cbranch_scc1 G1_ffn""")
    gemm_addr_setup(a, 1024, 4096)
    a("    s_waitcnt lgkmcnt(0)")
    srd(a, 8, 4, 5, 4 * MB)
    srd(a, 12, 6, 7, 8 * MB)
    a(f"""    s_lshl_b32 s55, s50, 18
    s_lshl_b32 s56, s54, 8              ; nt*128*2""")
    for i in range(4):
        a(f"    s_add_u32 s{40+i}, s55, {i*32*2048}")
        a(f"    s_add_u32 s{44+i}, s56, {i*16*4096*2}")
    gemm_zero_acc(a)
    gemm_kloop(a, 16, 4096)
    gemm_epi_coords(a)
    a(f"""    s_lshl_b32 s57, s52, 24             ; matrix*16MB
    s_add_u32 s57, s57, {WS_Q}
    s_add_u32 s16, s4, s57
    s_addc_u32 s17, s5, 0""")
    srd(a, 16, 16, 17, 16 * MB)
    a("""    s_lshl_b32 s55, s50, 7
    v_add_u32 v20, s55, v20             ; m global
    s_lshl_b32 s56, s54, 7
    v_add_u32 v21, s56, v21             ; n global
    v_lshlrev_b32 v20, 13, v20          ; m*8192
    v_lshlrev_b32 v21, 1, v21
    v_add_u32 v22, v20, v21
    s_nop 8""")
    for nb in range(2):
        for mb in range(2):
            d = 128 + (nb * 2 + mb) * 16
            for g in range(4):
                a(f"""    v_cvt_pk_bf16_f32 v24, v{d+4*g}, v{d+4*g+1}
    v_cvt_pk_bf16_f32 v25, v{d+4*g+2}, v{d+4*g+3}
    buffer_store_dwordx2 v[24:25], v22, s[16:19], 0 offen offset:{mb*32*8192 % 4096 if False else 0}""")
                a.lines.pop()
                a(f"    v_add_u32 v23, {mb*32*8192 + (nb*32 + 8*g)*2}, v22")
                a("    buffer_store_dwordx2 v[24:25], v23, s[16:19], 0 offen")
    a("    s_branch G1_done")
    a("G1_ffn:")
    gemm_addr_setup(a, 1024, 3584)
    a("    s_waitcnt lgkmcnt(0)")
    srd(a, 8, 4, 5, 4 * MB)
    srd(a, 12, 6, 7, 1024 * 3584 * 2)
    a(f"""    s_lshl_b32 s55, s50, 18
    s_lshl_b32 s56, s54, 8""")
    for i in range(4):
        a(f"    s_add_u32 s{40+i}, s55, {i*32*2048}")
        a(f"    s_add_u32 s{44+i}, s56, {i*16*3584*2}")
    gemm_zero_acc(a)
    gemm_kloop(a, 16, 3584)
    gemm_epi_coords(a)
    sadd64(a, 16, 17, 4, 5, WS_H1)
    srd(a, 16, 16, 17, 2048 * 3584 * 2)
    srd(a, 24, 22, 23, 3584 * 2)
    a(f"""    s_lshl_b32 s55, s50, 7
    v_add_u32 v20, s55, v20             ; m global
    s_lshl_b32 s56, s54, 7
    v_add_u32 v21, s56, v21             ; n global
    s_mov_b32 s58, {3584*2}
    s_mov_b32 s59, 0x3d372713
    v_mul_lo_u32 v20, v20, s58
    v_lshlrev_b32 v21, 1, v21
    v_add_u32 v22, v20, v21""")
    for nb in range(2):
        for g in range(4):
            a(f"    buffer_load_dwordx2 v[{32+16*nb+4*g}:{33+16*nb+4*g}], v21, s[24:27], 0 offen offset:{(nb*32+8*g)*2}")
    a("    s_waitcnt vmcnt(0)")
    for nb in range(2):
        for g in range(4):
            b = 32 + 16 * nb + 4 * g
            a(f"""    v_and_b32 v{b+3}, 0xffff0000, v{b+1}
    v_lshlrev_b32 v{b+2}, 16, v{b+1}
    v_and_b32 v{b+1}, 0xffff0000, v{b}
    v_lshlrev_b32 v{b}, 16, v{b}""")
    a("    s_nop 4")
    for nb in range(2):
        for mb in range(2):
            d = 128 + (nb * 2 + mb) * 16
            for g in range(4):
                b = 32 + 16 * nb + 4 * g
                for p in range(2):
                    x0, x1 = d + 4 * g + 2 * p, d + 4 * g + 2 * p + 1
                    a(f"""    v_cvt_pk_bf16_f32 v24, v{x0}, v{x1}
    v_lshlrev_b32 v{x0}, 16, v24
    v_and_b32 v{x1}, 0xffff0000, v24
    v_add_f32 v{x0}, v{x0}, v{b+2*p}
    v_add_f32 v{x1}, v{x1}, v{b+2*p+1}
    v_cvt_pk_bf16_f32 v24, v{x0}, v{x1}
    v_lshlrev_b32 v{x0}, 16, v24
    v_and_b32 v{x1}, 0xffff0000, v24""")
                    for x in (x0, x1):
                        a(f"""    v_mul_f32 v26, v{x}, v{x}
    v_fma_f32 v26, v26, s59, 1.0
    v_mul_f32 v26, v26, v{x}
    v_mul_f32 v26, 0x40135761, v26       ; 2*0.79788456*log2e
    v_exp_f32 v26, v26
    s_nop 0
    v_add_f32 v26, 1.0, v26
    v_rcp_f32 v26, v26
    s_nop 0
    v_fma_f32 v26, v26, -2.0, 2.0        ; 1+tanh = 2 - 2/(e+1)
    v_mul_f32 v27, 0.5, v{x}
    v_mul_f32 v{x}, v27, v26""")
                a(f"""    v_cvt_pk_bf16_f32 v24, v{d+4*g}, v{d+4*g+1}
    v_cvt_pk_bf16_f32 v25, v{d+4*g+2}, v{d+4*g+3}
    v_add_u32 v23, {mb*32*3584*2 + (nb*32 + 8*g)*2}, v22
    buffer_store_dwordx2 v[24:25], v23, s[16:19], 0 offen""")
    a("""G1_done:
    s_endpgm""")
    return kd(name, 192)


def main():
    a = Asm()
    launches = [
        ("ln_kernel", 512, 256, 0),
        ("gemm1_kernel", 16 * 124, 256, 2 * LDSBUF),
        ("rec_kernel", 256, 512, REC_LDS),
        ("att_kernel", 512, 256, ATT_LDS),
        ("gemm2_kernel", 128, 256, 2 * LDSBUF),
    ]
    hdr = []
    hdr.append(open("cdna_kernels/" + NAME + ".s.ref").read().split("; Override launch")[0].rstrip("\n"))
    for (k, g, b, l) in launches:
        hdr.append(f"; @launch kernel={k} grid=({g},1,1) block=({b},1,1) lds={l}")
    a.lines = "\n".join(hdr).split("\n")
    a('.amdgcn_target "amdgcn-amd-amdhsa--gfx950"\n.text')
    kds = []
    kds.append(gen_ln(a))
    kds.append(gen_gemm1(a))
    kds.append(gen_rec(a))
    kds.append(gen_att(a))
    kds.append(gen_gemm2(a))
    a('.section .rodata,"a"\n.p2align 6')
    for k in kds:
        a(k)
        a(".p2align 6")
    out = sys.argv[1] if len(sys.argv) > 1 else "cdna_kernels/" + NAME + ".s"
    open(out, "w").write(a.text())


if __name__ == "__main__":
    main()
```
